```python
import torch

def _softmax(x, axis=-1):
    return torch.softmax(x, dim=axis)
def _gelu(x):
    return torch.nn.functional.gelu(x, approximate="tanh")
def _silu(x):
    return torch.nn.functional.silu(x)
def _sigmoid(x):
    return torch.sigmoid(x)
def _layernorm(x, axis=-1, eps=1e-5):
    m = x.mean(dim=axis, keepdim=True)
    v = x.var(dim=axis, keepdim=True, unbiased=False)
    return (x - m) / torch.sqrt(v + eps)
def _scatter_add(tgt, idx, src, axis=0):
    return tgt.clone().index_add_(axis, idx, src)
def _segment_sum(src, seg, n):
    out = torch.zeros((n,) + src.shape[1:], dtype=src.dtype)
    return out.index_add_(0, seg, src)
def _pad(x, pw):
    flat = tuple(v for pair in reversed(pw) for v in pair)
    return torch.nn.functional.pad(x, flat)

kernel_name = 'standalone__window_attn_swin__vision'

def setup_inputs():

    _w = (lambda a: (lambda t: t.to(torch.bfloat16) if t.is_floating_point() else t)(torch.as_tensor(a)))
    H = W = 384
    C = 192
    ws = 8
    nh = 4
    shift = ws // 2
    coords = torch.stack(torch.meshgrid(torch.arange(ws), torch.arange(ws), indexing='ij'), 0).reshape(2, -1)
    rel = coords[:, :, None] - coords[:, None, :]
    rel[0] += ws - 1
    rel[1] += ws - 1
    rel[0] *= 2 * ws - 1
    rp_idx = rel.sum(0).to(torch.int64)
    img_mask = torch.zeros((1, H, W, 1), dtype=float)
    cnt = 0
    for hs in (slice(0, H - ws), slice(H - ws, H - shift), slice(H - shift, H)):
        for vs in (slice(0, W - ws), slice(W - ws, W - shift), slice(W - shift, W)):
            img_mask[:, hs, vs, :] = cnt
            cnt += 1
    mw = img_mask.reshape(1, H // ws, ws, W // ws, ws, 1).permute(0, 1, 3, 2, 4, 5).reshape(-1, ws * ws)
    am = mw[:, :, None] - mw[:, None, :]
    attn_mask = torch.where(am != 0, -100.0, 0.0).to(float)
    return {
        "x": _w((lambda *s: torch.randn(*s, dtype=torch.bfloat16) * 1.6)(1, H, W, C)),
        "wqkv": _w((lambda *s: torch.randn(*s, dtype=torch.bfloat16) * 1.6)(C, 3 * C) * 0.02),
        "wo": _w((lambda *s: torch.randn(*s, dtype=torch.bfloat16) * 0.05)(C, C) * 0.02),
        "rpb": _w((lambda *s: torch.randn(*s, dtype=torch.bfloat16) * 0.2)((2 * ws - 1) * (2 * ws - 1), nh)),
        "rp_idx": _w(rp_idx),
        "attn_mask": _w(attn_mask),
    }

def reference(x, wqkv, wo, rpb, rp_idx, attn_mask):
    B, H, W, C = x.shape
    N = rp_idx.shape[0]
    ws = int(round(N ** 0.5))
    nh = rpb.shape[-1]
    hd = C // nh
    shift = ws // 2
    xs = torch.roll(x, (-shift, -shift), (1, 2))
    nWh = H // ws
    nWw = W // ws
    xw = (lambda x, *d: x.permute(*d))(xs.reshape(B, nWh, ws, nWw, ws, C), 0, 1, 3, 2, 4, 5).reshape(B * nWh * nWw, N, C)
    qkv = (lambda x, *d: x.permute(*d))(torch.einsum('wnc,cd->wnd', xw, wqkv).reshape(-1, N, 3, nh, hd), 2, 0, 3, 1, 4)
    q, k, v = qkv[0], qkv[1], qkv[2]
    attn = torch.einsum('whid,whjd->whij', q, k) * (hd ** -0.5)
    bias = (lambda x, *d: x.permute(*d))(rpb[rp_idx.reshape(-1)].reshape(N, N, nh), 2, 0, 1)
    attn = attn + bias[None, :, :, :]
    attn = (attn.reshape(B, nWh * nWw, nh, N, N) + attn_mask[None, :, None, :, :]).reshape(-1, nh, N, N)
    attn = _softmax(attn, axis=-1)
    out = (lambda x, *d: x.permute(*d))(torch.einsum('whij,whjd->whid', attn, v), 0, 2, 1, 3).reshape(-1, N, C)
    out = torch.einsum('wnc,cd->wnd', out, wo)
    out = (lambda x, *d: x.permute(*d))(out.reshape(B, nWh, nWw, ws, ws, C), 0, 1, 3, 2, 4, 5).reshape(B, H, W, C)
    return torch.roll(out, (shift, shift), (1, 2))
```

```python
import re

def regs_of(tok):
    tok = tok.strip()
    m = re.fullmatch(r'-?\|?v(\d+)\|?', tok)
    if m: return [int(m.group(1))]
    m = re.fullmatch(r'v\[(\d+):(\d+)\]', tok)
    if m: return list(range(int(m.group(1)), int(m.group(2)) + 1))
    return []

def sregs_of(tok):
    tok = tok.strip()
    if tok == 'vcc': return ['vcc']
    m = re.fullmatch(r'-?s(\d+)', tok)
    if m: return [int(m.group(1))]
    m = re.fullmatch(r's\[(\d+):(\d+)\]', tok)
    if m: return list(range(int(m.group(1)), int(m.group(2)) + 1))
    return []

TRANS = ('v_exp_f32', 'v_rcp_f32', 'v_log_f32', 'v_rsq_f32', 'v_sqrt_f32')

def V(a, n=1):
    return f'v{a}' if n == 1 else f'v[{a}:{a+n-1}]'

class Em:
    def __init__(self):
        self.lines = []
        self.t = 0
        self.n = 0
        self.lm_t = -1000; self.lm_p = 0
        self.vw = {}; self.mw = {}; self.mc = {}; self.st = {}; self.sw = {}
        self.dot = {}
        self.m0t = -1000
        self.ds = []
        self.nops = 0
        self.maxv = 0

    def raw(self, s):
        self.lines.append(s)

    def label(self, name):
        self.lines.append(name + ':')

    def comment(self, s):
        self.lines.append('    ; ' + s)

    def nop(self, n):
        while n > 0:
            k = min(n, 16)
            self.lines.append(f'    s_nop {k-1}')
            self.t += k; self.n += k; n -= k; self.nops += k

    def settle(self):
        need = 0
        for r, (t, p, _) in self.mw.items():
            need = max(need, t + (13 if p == 8 else 9) - self.t)
        for r, (t, k) in self.vw.items():
            need = max(need, t + 3 - self.n)
        for r, t in self.st.items():
            need = max(need, t + 3 - self.n)
        for r, t in self.sw.items():
            need = max(need, t + 6 - self.n)
        for r, t in self.dot.items():
            need = max(need, t + 4 - self.n)
        if need > 0: self.nop(need)

    def lgkm0(self):
        self.i('s_waitcnt lgkmcnt(0)')

    def i(self, text):
        text = text.strip()
        parts = text.split(None, 1)
        op = parts[0]
        rest = parts[1] if len(parts) > 1 else ''
        ops = [o.strip() for o in rest.split(',')] if rest else []
        if ops:
            last = ops[-1].split()
            mods = last[1:]; ops[-1] = last[0]
        else:
            mods = []
        dst = []; src = []; ssrc = []; sdst = []
        kind = 'other'
        if op.startswith('v_mfma'):
            kind = 'mfma'; dst = regs_of(ops[0]); a = regs_of(ops[1]); b = regs_of(ops[2]); c = regs_of(ops[3])
            src = a + b + c
        elif op.startswith('ds_read'):
            kind = 'dsr'; dst = regs_of(ops[0]); src = regs_of(ops[1])
        elif op.startswith('ds_write'):
            kind = 'dsw'; src = sum((regs_of(o) for o in ops), [])
        elif op.startswith('buffer_load') or op.startswith('buffer_store'):
            if op.startswith('buffer_store'):
                kind = 'vst'; src = regs_of(ops[0]) + regs_of(ops[1])
            elif 'lds' in mods:
                kind = 'dma'; src = regs_of(ops[0])
            else:
                kind = 'vld'; dst = regs_of(ops[0]); src = regs_of(ops[1])
            ssrc = sum((sregs_of(o) for o in ops), [])
        elif op.startswith('v_'):
            kind = 'valu'
            dst = regs_of(ops[0]); sdst = sregs_of(ops[0])
            src = sum((regs_of(o) for o in ops[1:]), [])
            ssrc = sum((sregs_of(o) for o in ops[1:]), [])
            if 'permlane' in op and 'swap' in op:
                dst = regs_of(ops[0]) + regs_of(ops[1]); src = list(dst)
            if op.startswith('v_fmac') or op.startswith('v_dot2c'):
                src = src + dst
            if op.startswith('v_cndmask') and len(ops) == 3: ssrc.append('vcc')
        elif op.startswith('s_'):
            kind = 'salu'
        for r in dst + src: self.maxv = max(self.maxv, r)
        if op == 's_waitcnt':
            m = re.search(r'lgkmcnt\((\d+)\)', text)
            if m:
                n = int(m.group(1))
                self.ds = self.ds[len(self.ds) - n:] if n > 0 else []
        else:
            touch = set(dst) | set(src)
            idx = -1
            for k, d in enumerate(self.ds):
                if kind == 'dsr' and (d & set(dst)) and not (d & set(src)): continue
                if d & touch: idx = k
            if idx >= 0:
                n = len(self.ds) - 1 - idx
                n = min(n, 15)
                self.lines.append(f'    s_waitcnt lgkmcnt({n})')
                self.t += 1; self.n += 1
                self.ds = self.ds[len(self.ds) - n:] if n > 0 else []
        e = self.t; en = self.n
        def reqm(t0, ws):
            nonlocal e
            e = max(e, t0 + ws + 1)
        def req(t0, ws):
            nonlocal en
            en = max(en, t0 + ws + 1)
        if kind == 'mfma':
            p = 8 if '32x32x16' in op else 4
            for r in src:
                if r in self.vw: req(self.vw[r][0], 2)
                if r in self.dot: req(self.dot[r], 3)
            for r in a + b:
                if r in self.mw: reqm(self.mw[r][0], 12 if self.mw[r][1] == 8 else 8)
            for r in c:
                if r in self.mw:
                    t0, pp, key = self.mw[r]
                    if not (key == (c[0], len(c)) and pp == p): reqm(t0, 10 if pp == 8 else 6)
        if kind in ('valu', 'dsr', 'dsw', 'vst', 'vld', 'dma'):
            for r in src + dst:
                if r in self.mw: reqm(self.mw[r][0], 12 if self.mw[r][1] == 8 else 8)
        if kind == 'valu':
            for r in dst:
                if r in self.mc: reqm(self.mc[r][0], 7 if self.mc[r][1] == 8 else 3)
                if r in self.st: req(self.st[r], 2)
            if op not in TRANS:
                for r in src:
                    if r in self.vw and self.vw[r][1] == 'trans': req(self.vw[r][0], 1)
            if 'permlane' in op or 'dpp' in text or 'row_' in text or 'quad_perm' in text:
                for r in src:
                    if r in self.vw: req(self.vw[r][0], 2)
            if op.startswith('v_readfirstlane') or op.startswith('v_readlane'):
                for r in src:
                    if r in self.vw: req(self.vw[r][0], 1)
            for s in ssrc:
                if s in self.sw: req(self.sw[s], 2)
            for r in src + dst:
                if r in self.dot and not (op.startswith('v_dot2c') and r in dst): req(self.dot[r], 3)
        if kind in ('dsr', 'vld', 'mfma'):
            for r in dst:
                if r in self.st: req(self.st[r], 1)
        if kind in ('vst', 'vld', 'dma'):
            for s in ssrc:
                if s in self.sw: req(self.sw[s], 5)
        if kind == 'dma': req(self.m0t, 1)
        if en > self.n: self.nop(en - self.n)
        nat = self.t
        if kind == 'mfma':
            nat = max(nat, self.lm_t + self.lm_p - 1)
        if e > nat:
            self.nop(e - self.t)
        self.t = max(self.t, nat)
        t = self.t if kind == 'mfma' else self.n
        self.lines.append('    ' + text)
        if kind == 'mfma':
            self.lm_t = t; self.lm_p = p
            for r in dst: self.mw[r] = (t, p, (dst[0], len(dst))); self.vw.pop(r, None)
            for r in c: self.mc[r] = (t, p)
        elif kind == 'valu':
            for r in dst:
                self.vw[r] = (t, 'trans' if op in TRANS else 'valu'); self.mw.pop(r, None)
                if op.startswith('v_dot'): self.dot[r] = t
                else: self.dot.pop(r, None)
            for s in sdst: self.sw[s] = t
        elif kind == 'dsr':
            self.ds.append(set(dst))
            for r in dst: self.mw.pop(r, None); self.vw.pop(r, None)
        elif kind == 'dsw':
            self.ds.append(set())
            if 'b128' in op or 'b96' in op:
                for r in regs_of(ops[1]): self.st[r] = t
        elif kind == 'vst':
            if 'x4' in op or 'x3' in op:
                for r in regs_of(ops[0]): self.st[r] = t
        elif kind == 'salu':
            if ops and ops[0] == 'm0': self.m0t = t
            if op == 's_nop': self.t += int(ops[0]); self.n += int(ops[0])
        self.t += 1; self.n += 1

    def many(self, lst):
        for s in lst: self.i(s)
```

```python
import sys, struct, math, os
sys.path.insert(0, os.path.dirname(__file__))
from em import Em, V

def f2u(x): return struct.unpack('<I', struct.pack('<f', x))[0]

XROW = 147456
XBLK = 3136
XB0, XSZ = 0, 25088
OUTB = 50176
PB = 75264
OB = 108032
BIASB = 132608
LDS_TOTAL = 144128
NWIN = 9
SQ48 = math.sqrt(48.0)
CEXP = math.log2(math.e) / SQ48
MASKV = -100.0 * SQ48

OPT = dict(a.split('=') for a in sys.argv[2:])
def opt(k, d): return int(OPT.get(k, d))

S_WG, S_WAVE, S_H, S_I, S_C = 2, 3, 4, 5, 6
SX, SO, SWQ, SWO, SRP = 8, 12, 16, 20, 24
S_T0, S_T1, S_T2, S_T3 = 28, 29, 30, 31
S_XD, S_M0 = 32, 33
S_R0, S_C0 = 34, 35
S_OFF, S_OFF2 = 36, 37
S_ROWF, S_COLF = 38, 39
S_EX = 40

def srd(b): return f's[{b}:{b+3}]'

e = Em()
I = e.i

def mf32(d, a, b, c):
    return f'v_mfma_f32_32x32x16_bf16 {V(d,16)}, {V(a,4)}, {V(b,4)}, ' + (V(c,16) if c is not None else '0')
def mf16(d, a, b, c):
    return f'v_mfma_f32_16x16x32_bf16 {V(d,4)}, {V(a,4)}, {V(b,4)}, ' + (V(c,4) if c is not None else '0')
def cvt(d, lo, hi): return f'v_cvt_pk_bf16_f32 v{d}, v{lo}, v{hi}'
def dsr128(d, a, off):
    assert 0 <= off < 65536
    return f'ds_read_b128 {V(d,4)}, v{a} offset:{off}'
def dsw128(a, d, off):
    assert 0 <= off < 65536
    return f'ds_write_b128 v{a}, {V(d,4)} offset:{off}'
def dsw64(a, d, off):
    assert 0 <= off < 65536
    return f'ds_write_b64 v{a}, {V(d,2)} offset:{off}'

def divmod_const(q, r, u, d):
    sh = {6: 18, 12: 19, 24: 20, 48: 21}[d]
    I(f'v_mul_u32_u24 v{q}, 43691, v{u}')
    I(f'v_lshrrev_b32 v{q}, {sh}, v{q}')
    I(f'v_mul_u32_u24 v{r}, {d}, v{q}')
    I(f'v_sub_u32 v{r}, v{u}, v{r}')

def win_coords(delta):
    I(f's_add_i32 s{S_T2}, s{S_I}, {delta}')
    I(f's_lshl_b32 s{S_T2}, s{S_T2}, 8')
    I(f's_add_u32 s{S_T2}, s{S_T2}, s{S_WG}')
    I(f's_mul_i32 s{S_T0}, s{S_T2}, 43691')
    I(f's_lshr_b32 s{S_T0}, s{S_T0}, 21')
    I(f's_mul_i32 s{S_T1}, s{S_T0}, 48')
    I(f's_sub_u32 s{S_T1}, s{S_T2}, s{S_T1}')

def win_offset(delta):
    win_coords(delta)
    I(f's_lshl_b32 s{S_T0}, s{S_T0}, 3')
    I(f's_add_u32 s{S_T0}, s{S_T0}, s{S_R0}')
    I(f's_cmp_ge_u32 s{S_T0}, 384')
    I(f's_cselect_b32 s{S_T0}, 0, s{S_T0}')
    I(f's_lshl_b32 s{S_T1}, s{S_T1}, 3')
    I(f's_add_u32 s{S_T1}, s{S_T1}, s{S_C0}')
    I(f's_cmp_ge_u32 s{S_T1}, 384')
    I(f's_cselect_b32 s{S_T1}, 0, s{S_T1}')
    I(f's_mul_i32 s{S_T0}, s{S_T0}, {XROW}')
    I(f's_mul_i32 s{S_T1}, s{S_T1}, 384')
    I(f's_add_u32 s{S_OFF}, s{S_T0}, s{S_T1}')
    I(f's_add_u32 s{S_OFF2}, s{S_OFF}, {2*XROW}')

I(f's_cmp_ge_u32 s{S_WG}, 256')
I('s_cbranch_scc1 L_END')
I(f's_load_dwordx2 s[{SX}:{SX+1}], s[0:1], 0')
I(f's_load_dwordx2 s[{SWQ}:{SWQ+1}], s[0:1], 8')
I(f's_load_dwordx2 s[{SWO}:{SWO+1}], s[0:1], 16')
I(f's_load_dwordx2 s[{SRP}:{SRP+1}], s[0:1], 24')
I(f's_load_dwordx2 s[{SO}:{SO+1}], s[0:1], 48')
I('v_lshrrev_b32 v1, 6, v0')
I('v_and_b32 v0, 63, v0')
I(f'v_readfirstlane_b32 s{S_WAVE}, v1')
for b, sz in ((SX, 56623104), (SO, 56623104), (SWQ, 221184), (SWO, 73728), (SRP, 1800)):
    I(f's_mov_b32 s{b+2}, {sz}')
    I(f's_mov_b32 s{b+3}, 0x00020000')
I(f's_and_b32 s{S_H}, s{S_WAVE}, 3')
I(f's_mov_b32 s{S_C}, 0x{f2u(CEXP):08x}')
I(f's_mov_b32 s{S_XD}, {XSZ}')
I(f's_cmp_ge_u32 s{S_WAVE}, 4')
I('s_cbranch_scc1 L_B')

W = 112
XA0, XA1, BA, PW, MX, TM, NM = 1, 2, 3, 4, 5, 6, 7
MK = 8
Q0, Fd, SP, Fa, Fb, Fc, K0 = 12, 24, 28, 40, 44, 48, 52
T = [64, 80, 96]
S00, S10, S01, S11 = 28, 80, 96, 12
for k in range(3):
    I(f'v_add_u32 v20, {64*k}, v0')
    divmod_const(21, 22, 20, 12)
    I(f'v_mul_u32_u24 v{12+k}, 1152, v21')
    I('v_lshlrev_b32 v23, 4, v22')
    I(f'v_add_u32 v{12+k}, v{12+k}, v23')
    I('v_cmp_le_u32 vcc, 6, v22')
    I('v_mov_b32 v23, 0')
    I('v_mov_b32 v24, 288')
    I('v_cndmask_b32 v23, v23, v24, vcc')
    I(f'v_add_u32 v{12+k}, v{12+k}, v23')
I(f's_mul_i32 s{S_T0}, s{S_H}, 96')
I('s_waitcnt lgkmcnt(0)')
for ks in range(12):
    for k in range(3):
        I(f'buffer_load_dwordx4 {V(W+ks*12+k*4,4)}, v{12+k}, {srd(SWQ)}, s{S_T0} offen')
    if ks < 11: I(f's_add_u32 s{S_T0}, s{S_T0}, 18432')
I(f's_mul_i32 s{S_T1}, s{S_WAVE}, 3072')
I(f's_add_u32 s{S_T1}, s{S_T1}, {PB}')
I('v_lshlrev_b32 v16, 4, v0')
I(f'v_add_u32 v16, s{S_T1}, v16')
I('v_lshrrev_b32 v20, 5, v0')
I('v_bfe_u32 v21, v0, 2, 2')
I('v_lshl_add_u32 v21, v20, 3, v21')
I('v_mul_u32_u24 v17, 192, v21')
I('v_bfe_u32 v21, v0, 4, 1')
I('v_mul_u32_u24 v21, 96, v21')
I('v_add_u32 v17, v17, v21')
I('v_and_b32 v21, 3, v0')
I('v_lshl_add_u32 v17, v21, 3, v17')
I(f'v_add_u32 v17, s{S_T1}, v17')
I('v_bfe_u32 v21, v0, 3, 2')
I(f'v_mul_u32_u24 v{XA0}, {XBLK}, v21')
I('v_and_b32 v21, 7, v0')
I('v_mul_u32_u24 v21, 384, v21')
I(f'v_add_u32 v{XA0}, v{XA0}, v21')
I('v_bfe_u32 v21, v0, 1, 2')
I('v_xor_b32 v21, v21, v20')
I(f'v_lshl_add_u32 v{XA0}, v21, 4, v{XA0}')
I(f'v_xor_b32 v{XA1}, 32, v{XA0}')
I('v_bfe_u32 v21, v0, 2, 3')
I('v_sub_u32 v21, v21, v20')
I('v_add_u32 v21, 1, v21')
I(f'v_mul_u32_u24 v{BA}, 192, v21')
I('v_and_b32 v21, 3, v0')
I('v_sub_u32 v21, 3, v21')
I(f'v_lshl_add_u32 v{BA}, v21, 4, v{BA}')
I(f's_mul_i32 s{S_T2}, s{S_H}, 2880')
I(f's_add_u32 s{S_T2}, s{S_T2}, {BIASB}')
I(f'v_add_u32 v{BA}, s{S_T2}, v{BA}')
I('v_and_b32 v21, 31, v0')
I('v_lshlrev_b32 v21, 4, v21')
I(f'v_lshl_add_u32 v{PW}, v20, 10, v21')
I(f's_lshl_b32 s{S_T2}, s{S_H}, 13')
I(f's_add_u32 s{S_T2}, s{S_T2}, {PB}')
I(f'v_add_u32 v{PW}, s{S_T2}, v{PW}')
for ks in range(12):
    I(f's_waitcnt vmcnt({33-3*ks})')
    for k in range(3):
        I(dsw128(16, W+ks*12+k*4, k*1024))
    for t in range(3):
        for half in range(2):
            I(f'ds_read_b64_tr_b16 {V(W+ks*12+t*4+half*2,2)}, v17 offset:{half*768+t*32}')
I(f's_mov_b32 s{S_I}, 0')
e.lgkm0()
I('s_barrier')

def xread(slot, gi, kk):
    tt, g = divmod(gi, 6)
    return dsr128(slot, XA1 if kk else XA0, tt*4*XBLK + g*64)
def slots(gi): return (Fa, Fb) if gi % 2 == 0 else (Fc, Fd)
for gi in (0, 1):
    for kk in (0, 1): I(xread(slots(gi)[kk], gi, kk))
e.lgkm0()
e.settle()
e.label('L_A_LOOP')
if opt('aprio', 0): I(f's_setprio {opt("aprio",0)}')

def bias(dst, jt, it):
    return [dsr128(dst+4*q, BA, (6-2*q)*192 + (4*(jt-it)+4)*16) for q in range(4)]
def cvt8(src, dq, dk):
    return [cvt(dq+j, src+2*j, src+2*j+1) for j in range(4)] + [cvt(dk+j, src+8+2*j, src+8+2*j+1) for j in range(4)]

mf = []; fill = {}
def addf(k, lst): fill.setdefault(k, []).extend(lst)
for gi in range(12):
    tt, g = divmod(gi, 6)
    for t in range(3):
        for kk in range(2):
            ks = 2*g + kk
            mf.append(mf32(T[t], W+ks*12+t*4, slots(gi)[kk], None if ks == 0 else T[t]))
    if gi + 2 < 12:
        addf(gi*6+4, [xread(slots(gi)[0], gi+2, 0)])
        addf(gi*6+5, [xread(slots(gi)[1], gi+2, 1)])
sv = e.lines; e.lines = []
win_coords(0)
flag_code = [l.strip() for l in e.lines]; e.lines = sv
flag_code += [f's_cmp_eq_u32 s{S_T0}, 47', f's_cselect_b32 s{S_ROWF}, 1, 0',
              f's_cmp_eq_u32 s{S_T1}, 47', f's_cselect_b32 s{S_COLF}, 1, 0',
              f's_or_b32 s{S_T2}, s{S_ROWF}, s{S_COLF}']
for j, c in enumerate(flag_code): addf(6 + j//2, [c])
for t in range(3):
    c = cvt8(T[t], Q0+4*t, K0+4*t)
    addf(30 + 3 + 2*t, c[:4]); addf(30 + 4 + 2*t, c[4:])
addf(65, ['s_waitcnt lgkmcnt(0)', 's_barrier'] + bias(S00, 0, 0))
Q1 = [T[0], T[0]+8, Fb]; K1 = [T[0]+4, T[0]+12, Fc]
c = cvt8(T[0], Q1[0], K1[0]); addf(69, c[:4]); addf(70, c[4:])
addf(71, cvt8(T[1], Q1[1], K1[1]) + bias(S10, 1, 0))
c = cvt8(T[2], Q1[2], K1[2]); addf(73, c[:4]); addf(74, c[4:] + bias(S01, 0, 1))
Q0g = [Q0, Q0+4, Q0+8]; K0g = [K0, K0+4, K0+8]
for (d, kq, qq) in ((S00, K0g, Q0g), (S10, K1, Q0g), (S01, K0g, Q1), (S11, K1, Q1)):
    for s in range(3): mf.append(mf32(d, kq[s], qq[s], d))
addf(77, bias(S11, 1, 1))
def maxchain(dst, src, first):
    out = []
    if first:
        out.append(f'v_max3_f32 v{dst}, v{src}, v{src+1}, v{src+2}')
        rest = list(range(src+3, src+16))
    else:
        rest = list(range(src, src+16))
    while len(rest) >= 2:
        out.append(f'v_max3_f32 v{dst}, v{dst}, v{rest[0]}, v{rest[1]}'); rest = rest[2:]
    if rest: out.append(f'v_max_f32 v{dst}, v{dst}, v{rest[0]}')
    return out
def maskbr(k): return [f's_cbranch_scc1 L_MASK{k}', f'L_MRET{k}:']
c = maskbr(0) + maxchain(MX, S00, True); addf(76, c[:5]); addf(77, c[5:7]); addf(78, c[7:])
c = maskbr(1) + maxchain(MX, S10, False); addf(79, c[:6]); addf(80, c[6:])
def crosshalf(mx, tm, nm):
    return [f'v_mov_b32 v{tm}, v{mx}', f'v_permlane32_swap_b32 v{mx}, v{tm}', f'v_max_f32 v{mx}, v{mx}, v{tm}',
            f'v_mul_f32 v{nm}, s{S_C}, v{mx}']
addf(81, crosshalf(MX, TM, NM))
def unit(S, u, nm, jt, it):
    rr = [4*u+j for j in range(4)] + [8+4*u+j for j in range(4)]
    out = [f'v_fma_f32 v{S+r}, v{S+r}, s{S_C}, -v{nm}' for r in rr]
    out += [f'v_exp_f32 v{S+r}, v{S+r}' for r in rr]
    out += [cvt(S+4*u+j, S+rr[2*j], S+rr[2*j+1]) for j in range(4)]
    out += [dsw128(PW, S+4*u, (jt*4+2*u)*1024 + it*512)]
    return out
u0 = unit(S00, 0, NM, 0, 0)
addf(82, u0[:5]); addf(83, u0[5:])
def emit(s):
    if s.endswith(':'): e.label(s[:-1])
    else: I(s)
for k, m in enumerate(mf):
    I(m)
    for s in fill.get(k, []): emit(s)
for s in unit(S00, 1, NM, 0, 0): I(s)
I(f'v_add_u32 v{XA0}, s{S_XD}, v{XA0}')
I(f'v_add_u32 v{XA1}, s{S_XD}, v{XA1}')
I(xread(Fa, 0, 0)); I(xread(Fb, 0, 1)); I(xread(Fc, 1, 0))
for s in unit(S10, 0, NM, 1, 0): I(s)
NM1 = MK+3 if False else TM
for s in maskbr(2) + maxchain(MX, S01, True) + maskbr(3) + maxchain(MX, S11, False): emit(s)
I(f'v_mov_b32 v{TM}, v{MX}')
u = unit(S10, 1, NM, 1, 0)
for s in u[:8]: I(s)
I(f'v_permlane32_swap_b32 v{MX}, v{TM}')
I(f'v_max_f32 v{MX}, v{MX}, v{TM}')
I(f'v_mul_f32 v{NM}, s{S_C}, v{MX}')
for s in u[8:]: I(s)
for s in unit(S11, 0, NM, 1, 1) + unit(S11, 1, NM, 1, 1): I(s)
I(xread(Fd, 1, 1))
for s in unit(S01, 0, NM, 0, 1) + unit(S01, 1, NM, 0, 1): I(s)
I(f's_sub_u32 s{S_XD}, 0, s{S_XD}')
I(f's_add_u32 s{S_I}, s{S_I}, 1')
I(f's_cmp_lt_u32 s{S_I}, {NWIN}')
e.lgkm0()
I('s_barrier')
e.settle()
I('s_cbranch_scc1 L_A_LOOP')
I('s_barrier')
I('s_barrier')
I('s_endpgm')
for k, (S, diag) in enumerate(((S00, True), (S10, False), (S01, False), (S11, True))):
    e.label(f'L_MASK{k}')
    I('s_nop 12')
    if k == 0:
        I(f'v_bfe_u32 v{MK}, v0, 4, 1')
        I(f'v_and_b32 v{MK}, s{S_ROWF}, v{MK}')
        I(f'v_xor_b32 v{MK+1}, s{S_ROWF}, v{MK}')
        I(f'v_or_b32 v{MK+2}, s{S_COLF}, v{MK}')
        I(f'v_or_b32 v{MK+3}, s{S_COLF}, v{MK+1}')
        for j in range(4):
            I(f'v_cvt_f32_u32 v{MK+j}, v{MK+j}')
            I(f'v_mul_f32 v{MK+j}, 0x{f2u(MASKV):08x}, v{MK+j}')
    for r in range(16):
        I(f'v_add_f32 v{S+r}, v{S+r}, v{MK + (0 if diag else 2) + (r>>3)}')
    I(f's_branch L_MRET{k}')

e.settle()
e.label('L_B')
VO = 1
XBr, OL, OWA, OWB, PR, OW4, OW2, ORD = 4, 5, 6, 7, 8, 9, 10, 11
ONES = 12
VC, VN = 16, 40
SL = 64
AC = [88, 100]
WV, WO = 112, 184
I(f's_and_b32 s{S_R0}, s{S_H}, 1')
I(f's_lshl_b32 s{S_R0}, s{S_R0}, 2')
I(f's_add_u32 s{S_R0}, s{S_R0}, 4')
I(f's_lshr_b32 s{S_C0}, s{S_H}, 1')
I(f's_lshl_b32 s{S_C0}, s{S_C0}, 2')
I(f's_add_u32 s{S_C0}, s{S_C0}, 4')
I(f's_mov_b32 s{S_I}, -2')
for k in range(3):
    I(f'v_add_u32 v70, {64*k}, v0')
    divmod_const(71, 72, 70, 24)
    I('v_bfe_u32 v73, v71, 1, 2')
    I('v_xor_b32 v72, v72, v73')
    I('v_lshlrev_b32 v72, 4, v72')
    I('v_lshrrev_b32 v73, 2, v71')
    I(f'v_mul_u32_u24 v73, {XROW}, v73')
    I('v_and_b32 v71, 3, v71')
    I('v_mul_u32_u24 v71, 384, v71')
    I(f'v_add3_u32 v{VO+k}, v71, v72, v73')
    if k: I(f'v_subrev_u32 v{VO+k}, {1024*k}, v{VO+k}')
for k in range(3):
    I(f'v_add_u32 v70, {64*k}, v0')
    divmod_const(71, 72, 70, 6)
    I('v_lshlrev_b32 v72, 4, v72')
    I(f'v_mul_u32_u24 v73, 1152, v71')
    I(f'v_add_u32 v{64+k}, v73, v72')
    I(f'v_mul_u32_u24 v73, 384, v71')
    I(f'v_add_u32 v{67+k}, v73, v72')
    I('v_lshrrev_b32 v73, 4, v71')
    I(f'v_mul_u32_u24 v73, {32*384}, v73')
    I(f'v_add_u32 v{76+k}, v{67+k}, v73')
I(f's_mul_i32 s{S_M0}, s{S_H}, {2*XBLK}')
def dma_issue():
    win_offset(2)
    I(f's_mov_b32 m0, s{S_M0}')
    for k in range(3):
        I(f'buffer_load_dwordx4 v{VO+k}, {srd(SX)}, s{S_OFF} offen offset:{1024*k} lds')
    I(f's_add_u32 m0, s{S_M0}, {XBLK}')
    for k in range(3):
        I(f'buffer_load_dwordx4 v{VO+k}, {srd(SX)}, s{S_OFF2} offen offset:{1024*k} lds')
I('s_waitcnt lgkmcnt(0)')
dma_issue()
I(f's_mul_i32 s{S_T3}, s{S_H}, 96')
I(f's_add_u32 s{S_T3}, s{S_T3}, 768')
for ks in range(6):
    for k in range(3):
        I(f'buffer_load_dwordx4 {V(WV+ks*12+k*4,4)}, v{64+k}, {srd(SWQ)}, s{S_T3} offen')
    if ks < 5: I(f's_add_u32 s{S_T3}, s{S_T3}, {32*1152}')
I(f's_mov_b32 s{S_I}, -1')
I(f's_add_u32 s{S_M0}, s{S_M0}, {XSZ}')
dma_issue()
I(f's_sub_u32 s{S_M0}, s{S_M0}, {XSZ}')
I(f's_lshl_b32 s{S_T3}, s{S_H}, 6')
for k in range(3):
    I(f'v_add_u32 v70, s{S_T3}, v0')
    if k: I(f'v_add_u32 v70, {256*k}, v70')
    divmod_const(71, 72, 70, 48)
    I('v_mul_u32_u24 v71, 15, v71')
    I('v_add_u32 v71, 14, v71')
    I('v_lshrrev_b32 v73, 2, v72')
    I('v_sub_u32 v71, v71, v73')
    I('v_and_b32 v73, 3, v72')
    I('v_sub_u32 v71, v71, v73')
    I('v_lshlrev_b32 v71, 3, v71')
    I(f'buffer_load_dwordx2 {V(VC+2*k,2)}, v71, {srd(SRP)}, 0 offen')
I(f's_mul_i32 s{S_T3}, s{S_H}, 96')
for ks in range(6):
    if ks == 4:
        I(f's_mul_i32 s{S_T3}, s{S_H}, 96')
        I(f's_add_u32 s{S_T3}, s{S_T3}, {32*384}')
    for k in range(3):
        I(f'buffer_load_dwordx4 {V(WO+ks*12+k*4,4)}, v{(67 if ks < 4 else 76)+k}, {srd(SWO)}, s{S_T3} offen')
    if ks < 3: I(f's_add_u32 s{S_T3}, s{S_T3}, {48*384}')
    if ks == 4: I(f's_add_u32 s{S_T3}, s{S_T3}, {96*384}')
STW, STV, STO, BW = VC+6, VC+7, VC+8, VC+9
I(f's_mul_i32 s{S_T1}, s{S_WAVE}, 3072')
I(f's_add_u32 s{S_T1}, s{S_T1}, {PB}')
I('v_lshlrev_b32 v70, 4, v0')
I(f'v_add_u32 v{STW}, s{S_T1}, v70')
I('v_lshrrev_b32 v71, 4, v0')
I('v_bfe_u32 v72, v0, 2, 2')
I('v_and_b32 v73, 3, v0')
I('v_lshl_add_u32 v74, v71, 3, v72')
I('v_mul_u32_u24 v74, 96, v74')
I('v_lshl_add_u32 v74, v73, 3, v74')
I(f'v_add_u32 v{STV}, s{S_T1}, v74')
I('v_lshl_add_u32 v74, v71, 2, v72')
I('v_mul_u32_u24 v74, 96, v74')
I(f'v_add_u32 v74, s{S_T1}, v74')
I(f'v_lshl_add_u32 v{STO}, v73, 4, v74')
I(f'v_lshl_add_u32 v{STO+2}, v73, 3, v74')
I(f's_lshl_b32 s{S_T2}, s{S_H}, 8')
I(f's_add_u32 s{S_T2}, s{S_T2}, {BIASB}')
I(f'v_lshlrev_b32 v{BW}, 2, v0')
I(f'v_add_u32 v{BW}, s{S_T2}, v{BW}')
I('v_bfe_u32 v74, v0, 3, 1')
I(f'v_mul_u32_u24 v74, {XBLK}, v74')
I('v_and_b32 v75, 7, v0')
I('v_mul_u32_u24 v75, 384, v75')
I('v_add_u32 v74, v74, v75')
I('v_bfe_u32 v75, v0, 1, 2')
I('v_xor_b32 v76, v71, v75')
I(f'v_lshl_add_u32 v{XBr}, v76, 4, v74')
I(f's_mul_i32 s{S_T2}, s{S_H}, 6')
I(f'v_add_u32 v76, s{S_T2}, v71')
I('v_xor_b32 v76, v76, v75')
I(f'v_lshl_add_u32 v{OW4}, v76, 4, v74')
I(f'v_add_u32 v{OW4}, {OUTB}, v{OW4}')
I('v_lshrrev_b32 v76, 1, v71')
I(f'v_add3_u32 v76, v76, s{S_T2}, 4')
I('v_xor_b32 v76, v76, v75')
I(f'v_lshl_add_u32 v{OW2}, v76, 4, v74')
I('v_and_b32 v76, 1, v71')
I(f'v_lshl_add_u32 v{OW2}, v76, 3, v{OW2}')
I(f'v_add_u32 v{OW2}, {OUTB}, v{OW2}')
I(f'v_add_u32 v{OL}, {OB}, v70')
I(f's_lshl_b32 s{S_T2}, s{S_H}, 12')
I(f'v_add_u32 v{OWA}, s{S_T2}, v{OL}')
I(f's_lshr_b32 s{S_T2}, s{S_H}, 1')
I(f's_add_u32 s{S_T2}, s{S_T2}, 4')
I(f's_lshl_b32 s{S_T2}, s{S_T2}, 12')
I(f's_and_b32 s{S_T3}, s{S_H}, 1')
I(f's_lshl_b32 s{S_T3}, s{S_T3}, 3')
I(f's_add_u32 s{S_T2}, s{S_T2}, s{S_T3}')
I(f'v_add_u32 v{OWB}, s{S_T2}, v{OL}')
I('v_and_b32 v76, 15, v0')
I('v_lshlrev_b32 v76, 4, v76')
I(f'v_lshl_add_u32 v{PR}, v71, 10, v76')
I(f's_lshl_b32 s{S_T2}, s{S_H}, 13')
I(f's_add_u32 s{S_T2}, s{S_T2}, {PB}')
I(f'v_add_u32 v{PR}, s{S_T2}, v{PR}')
I(f's_add_u32 s{S_T2}, s{S_M0}, {OUTB}')
I(f'v_add_u32 v{ORD}, s{S_T2}, v70')
for j in range(4): I(f'v_mov_b32 v{ONES+j}, 0x3f803f80')
for ks in range(6):
    I(f's_waitcnt vmcnt({27 + 15 - 3*ks})')
    for k in range(3): I(dsw128(STW, WV+ks*12+k*4, k*1024))
    for t in range(3):
        for half in range(2):
            I(f'ds_read_b64_tr_b16 {V(WV+ks*12+t*4+half*2,2)}, v{STV} offset:{half*384+t*32}')
e.lgkm0()
I('s_barrier')
I('s_branch L_B_STUB')

def fread(f):
    s = SL + 4*(f % 6)
    if f < 24:
        qt, ks = divmod(f, 6)
        return dsr128(s, OL, ks*4096 + qt*1024)
    m, ks = divmod(f-24, 6)
    return dsr128(s, XBr, m*2*XBLK + ks*64)
def pack6(a): return [cvt(a+j, a+2*j, a+2*j+1) for j in range(6)]
def vcvt(m):
    a = AC[m & 1]; s = m >> 1
    out = []
    for t in range(3):
        d = VN + (t*2+s)*4 + (m & 1)*2
        out += [cvt(d, a+4*t, a+4*t+1), cvt(d+1, a+4*t+2, a+4*t+3)]
    return out
def proj_epi(qt):
    a = AC[qt & 1]
    return pack6(a) + [dsw128(OW4, a, qt*2*XBLK), dsw64(OW2, a+4, qt*2*XBLK)]

e.settle()
e.label('L_B_LOOP')
I('s_nop 4')
for s in vcvt(3): I(s)
I(f's_cmp_eq_u32 s{S_I}, 0')
I('s_cbranch_scc1 L_B_FIRST')
I(f's_cmp_eq_u32 s{S_I}, {NWIN+1}')
I('s_cbranch_scc1 L_B_STORE')
PF = [64, 72]; OA = [80, 96]
def pread(qt): return [dsr128(PF[qt & 1]+4*s, PR, s*4096 + qt*256) for s in range(2)]
def pv_mf(qt):
    out = []
    for s in range(2):
        out.append(mf16(OA[qt & 1]+12, ONES, PF[qt & 1]+4*s, None if s == 0 else OA[qt & 1]+12))
        for t in range(3):
            out.append(mf16(OA[qt & 1]+4*t, VC+(t*2+s)*4, PF[qt & 1]+4*s, None if s == 0 else OA[qt & 1]+4*t))
    return out
def pv_epi(qt):
    a = OA[qt & 1]
    out = [f'v_rcp_f32 v{a+12}, v{a+12}']
    out += [f'v_mul_f32 v{a+j}, v{a+j}, v{a+12}' for j in range(12)]
    out += pack6(a) + [dsw128(OWA, a, qt*1024), dsw64(OWB, a+4, qt*1024)]
    return out
for s in pread(0) + pread(1): I(s)
for s in pv_mf(0): I(s)
for s in pread(2): I(s)
for qt in range(1, 4):
    m = pv_mf(qt); ep = pv_epi(qt-1)
    pos = 0
    for k, x in enumerate(m):
        I(x)
        if k >= 2:
            for s in ep[pos:pos+4]: I(s)
            pos += 4
    for s in ep[pos:]: I(s)
    if qt == 1:
        for s in pread(3): I(s)
for s in pv_epi(3): I(s)
I(f's_cmp_eq_u32 s{S_I}, 1')
I('s_cbranch_scc1 L_B_COPY')
e.settle()
e.label('L_B_STORE')
for k in range(6): I(dsr128(SL+4*k, ORD, (k//3)*XBLK + (k % 3)*1024))
win_offset(-2)
for k in range(6):
    I(f'buffer_store_dwordx4 {V(SL+4*k,4)}, v{VO+k%3}, {srd(SO)}, s{S_OFF if k < 3 else S_OFF2} offen offset:{1024*(k%3)}')
I(f's_cmp_eq_u32 s{S_I}, {NWIN+1}')
I('s_cbranch_scc1 L_END')
e.settle()
e.label('L_B_COPY')
for j in range(24): I(f'v_mov_b32 v{VC+j}, v{VN+j}')
I(f's_cmp_ge_u32 s{S_I}, 2')
I('s_cbranch_scc1 L_B_W6')
I('s_waitcnt vmcnt(0)')
e.label('L_B_W6')
I('s_waitcnt vmcnt(6) lgkmcnt(0)')
I('s_barrier')
for f in range(6): I(fread(f))
I(f's_cmp_ge_u32 s{S_I}, {NWIN-2}')
I('s_cbranch_scc1 L_B_NODMA')
dma_issue()
e.label('L_B_NODMA')
I(f's_add_u32 s{S_M0}, s{S_M0}, s{S_XD}')
I(f'v_add_u32 v{XBr}, s{S_XD}, v{XBr}')
I(f's_sub_u32 s{S_XD}, 0, s{S_XD}')
I(f's_cmp_eq_u32 s{S_I}, 0')
I('s_cbranch_scc1 L_B_STUB')
def gemm16(f0, nf, wbase, wfirst, epi):
    for f in range(f0, f0+nf):
        tl, ks = divmod(f-f0, 6)
        a = AC[tl & 1]; s = SL + 4*(f % 6)
        ep = epi.get(tl, [])
        for t in range(3):
            w = wbase + ks*12 + t*4
            I(mf16(a+4*t, w, s, None if ks == 0 else a+4*t) if wfirst else mf16(a+4*t, s, w, None if ks == 0 else a+4*t))
            j = ks*3 + t - 3
            if 0 <= j < len(ep): I(ep[j])
        if f + 6 < 48: I(fread(f+6))
gemm16(0, 24, WO, True, {qt: proj_epi(qt-1) for qt in range(1, 4)})
I(f's_cmp_ge_u32 s{S_I}, {NWIN-1}')
I('s_cbranch_scc1 L_B_TAIL')
e.label('L_B_VG')
gemm16(24, 24, WV, False, {0: proj_epi(3), 1: vcvt(0), 2: vcvt(1), 3: vcvt(2)})
e.label('L_B_ALPHA')
I(f's_add_u32 s{S_I}, s{S_I}, 1')
I(f's_cmp_eq_u32 s{S_I}, 0')
I('s_cbranch_scc1 L_B_LOOP')
e.lgkm0()
I('s_barrier')
I('s_branch L_B_LOOP')
e.label('L_B_STUB')
e.lgkm0()
for f in range(24, 30): I(fread(f))
e.lgkm0()
I('s_branch L_B_VG')
e.label('L_B_TAIL')
I('s_nop 8')
e.lgkm0()
for s in proj_epi(3): I(s)
I('s_branch L_B_ALPHA')
e.label('L_B_FIRST')
I('s_waitcnt vmcnt(18)')
for k in range(3):
    if k == 2:
        I(f's_lshl_b32 s{S_T3}, s{S_H}, 6')
        I(f'v_add_u32 v70, s{S_T3}, v0')
        I('v_cmp_gt_u32 vcc, 208, v70')
        I(f's_and_saveexec_b64 s[{S_EX}:{S_EX+1}], vcc')
    for hh in range(4):
        src = VC + 2*k + (hh >> 1)
        if hh & 1: I(f'v_and_b32 v{64+hh}, 0xffff0000, v{src}')
        else: I(f'v_lshlrev_b32 v{64+hh}, 16, v{src}')
        I(f'v_mul_f32 v{64+hh}, 0x{f2u(SQ48):08x}, v{64+hh}')
        I(f'ds_write_b32 v{BW}, v{64+hh} offset:{hh*2880 + k*1024}')
I(f's_mov_b64 exec, s[{S_EX}:{S_EX+1}]')
for ks in range(6):
    I(f's_waitcnt vmcnt({15 - 3*ks})')
    for k in range(3): I(dsw128(STW, WO+ks*12+k*4, k*1024))
    for t in range(3):
        for half in range(2):
            a = STO if t < 2 else STO+2
            off = half*16*96 + (t*8 if t < 2 else 64)
            I(f'ds_read_b64_tr_b16 {V(WO+ks*12+t*4+half*2,2)}, v{a} offset:{off}')
e.lgkm0()
I('s_branch L_B_COPY')
e.label('L_END')

hdr = open('standalone__window_attn_swin__vision.s.ref').read().split('\n')
out = []
for l in hdr:
    if l.startswith('; @launch'):
        out.append(f'; @launch grid=(256,1,1) block=(512,1,1) lds={LDS_TOTAL}')
    elif l.startswith('standalone__window_attn_swin__vision_kernel:'):
        out.append(l); out += e.lines; skipping = True
    elif l.startswith('s_endpgm'):
        skipping = False; out.append(l)
    elif l.startswith('    '):
        continue
    else:
        out.append(l)
open(sys.argv[1], 'w').write('\n'.join(out))
print('lines', len(e.lines), 'nops', e.nops, 'maxv', e.maxv)
```
